```python
import torch

def _softmax(x, axis=-1):
    return torch.softmax(x, dim=axis)
def _gelu(x):
    return torch.nn.functional.gelu(x, approximate="tanh")
def _silu(x):
    return torch.nn.functional.silu(x)
def _sigmoid(x):
    return torch.sigmoid(x)
def _layernorm(x, axis=-1, eps=1e-5):
    m = x.mean(dim=axis, keepdim=True)
    v = x.var(dim=axis, keepdim=True, unbiased=False)
    return (x - m) / torch.sqrt(v + eps)
def _scatter_add(tgt, idx, src, axis=0):
    return tgt.clone().index_add_(axis, idx, src)
def _segment_sum(src, seg, n):
    out = torch.zeros((n,) + src.shape[1:], dtype=src.dtype)
    return out.index_add_(0, seg, src)
def _pad(x, pw):
    flat = tuple(v for pair in reversed(pw) for v in pair)
    return torch.nn.functional.pad(x, flat)

kernel_name = 'sequential_preLN__softmax_full_mha__glu_gated_swiglu__prompt'

def setup_inputs():

    _w = (lambda a: (lambda t: t.to(torch.bfloat16) if t.is_floating_point() else t)(torch.as_tensor(a)))
    def _A_setup():
        B, S, D = 1, 2048, 512
        return {
            "x": _w((lambda *s: torch.randn(*s, dtype=torch.bfloat16) * 0.05)(B, S, D)),
            "wqkv": _w((lambda *s: torch.randn(*s, dtype=torch.bfloat16) * 0.05)(D, 3 * D)),
            "wo": _w((lambda *s: torch.randn(*s, dtype=torch.bfloat16) * 0.05)(D, D)),
        }
    _A_in = _A_setup()

    def _B_setup():
        B, S, D, F = 1, 2048, 512, 1792
        return {
            "x": _w((lambda *s: torch.randn(*s, dtype=torch.bfloat16) * 0.05)(B, S, D)),
            "w1": _w((lambda *s: torch.randn(*s, dtype=torch.bfloat16) * 0.4)(D, F) * (2.0 / D) ** 0.5),
            "w3": _w((lambda *s: torch.randn(*s, dtype=torch.bfloat16) * 0.4)(D, F) * (2.0 / D) ** 0.5),
            "w2": _w((lambda *s: torch.randn(*s, dtype=torch.bfloat16) * 0.4)(F, D) * (2.0 / F) ** 0.5),
        }
    _B_in = _B_setup()

    return {
        "A_x": _A_in["x"],
        "A_wqkv": _A_in["wqkv"],
        "A_wo": _A_in["wo"],
        "B_x": _B_in["x"],
        "B_w1": _B_in["w1"],
        "B_w3": _B_in["w3"],
        "B_w2": _B_in["w2"],
    }

def reference(A_x, A_wqkv, A_wo, B_x, B_w1, B_w3, B_w2):
    def _A_ref(x, wqkv, wo):
        B, S, D = x.shape
        H = 32; Dh = D // H
        qkv = (lambda x, *d: x.permute(*d))((x @ wqkv).reshape(B, S, 3, H, Dh), 2, 0, 3, 1, 4)
        q, k, v = qkv[0], qkv[1], qkv[2]
        scale = Dh ** -0.5
        scores = torch.einsum("bhqd,bhkd->bhqk", q, k) * scale
        p = _softmax(scores, axis=-1)
        o = torch.einsum("bhqk,bhkd->bhqd", p, v)
        return (lambda x, *d: x.permute(*d))(o, 0, 2, 1, 3).reshape(B, S, D) @ wo

    def _B_ref(x, w1, w3, w2):
        gate = torch.einsum("bsd,df->bsf", x, w1)
        up = torch.einsum("bsd,df->bsf", x, w3)
        h = _silu(gate) * up
        out = torch.einsum("bsf,fd->bsd", h, w2)
        return out

    x = A_x
    h = x + _A_ref(_layernorm(x, axis=-1), A_wqkv, A_wo)
    h2 = h + _B_ref(_layernorm(h, axis=-1), B_w1, B_w3, B_w2)
    return h2
```

```python
import re

TRANS = ("v_exp_f32", "v_log_f32", "v_rcp_f32", "v_rsq_f32", "v_sqrt_f32", "v_sin_f32", "v_cos_f32",
         "v_exp_f16", "v_rcp_f16", "v_rcp_iflag_f32")
NODST_S = ("s_cmp", "s_waitcnt", "s_barrier", "s_nop", "s_branch", "s_cbranch", "s_endpgm", "s_setprio",
           "s_sleep", "s_bitcmp", "s_setpc", "s_sendmsg", "s_setreg", "s_ttrace", "s_sethalt")

def v(i, n=1):
    return f"v{i}" if n == 1 else f"v[{i}:{i+n-1}]"
def a(i, n=1):
    return f"a{i}" if n == 1 else f"a[{i}:{i+n-1}]"
def s(i, n=1):
    return f"s{i}" if n == 1 else f"s[{i}:{i+n-1}]"

_rg = re.compile(r"^(-|\|)?([vsa])(\d+)\|?$")
_rr = re.compile(r"^(-|\|)?([vsa])\[(\d+):(\d+)\]\|?$")
def regs_of(op):
    op = op.strip()
    if op.startswith("neg(") or op.startswith("abs("):
        op = op[4:-1]
    m = _rg.match(op)
    if m: return [(m.group(2), int(m.group(3)))]
    m = _rr.match(op)
    if m: return [(m.group(2), i) for i in range(int(m.group(3)), int(m.group(4)) + 1)]
    if op == "vcc": return [("s", "vcc_lo"), ("s", "vcc_hi")]
    if op in ("vcc_lo", "vcc_hi", "m0", "exec_lo", "exec_hi"): return [("s", op)]
    if op == "exec": return [("s", "exec_lo"), ("s", "exec_hi")]
    return []

class Ins:
    __slots__ = ("text", "op", "ops", "mods", "dst", "src", "kind", "label", "target", "A", "B", "C", "passes",
                 "cnt", "wide", "comment")
    def __init__(self, text):
        self.text = text.strip()
        self.label = None; self.target = None
        self.A = self.B = self.C = ()
        self.passes = 0; self.cnt = None; self.wide = False
        t = self.text
        if t.endswith(":"):
            self.label = t[:-1]; self.op = "label"; self.kind = "label"; self.dst = []; self.src = []; self.ops = []; self.mods = []
            return
        if t.startswith("."):
            self.op = "dir"; self.kind = "dir"; self.dst = []; self.src = []; self.ops = []; self.mods = []
            return
        parts = t.split(None, 1)
        op = parts[0]; rest = parts[1] if len(parts) > 1 else ""
        self.op = op
        ops = []; cur = ""; depth = 0
        for ch in rest:
            if ch in "[(": depth += 1
            if ch in "])": depth -= 1
            if ch == "," and depth == 0:
                ops.append(cur.strip()); cur = ""
            else:
                cur += ch
        if cur.strip(): ops.append(cur.strip())
        mods = []
        if ops and not op.startswith("s_waitcnt"):
            last = ops[-1].split()
            ops[-1] = last[0]; mods = last[1:]
        self.ops = ops; self.mods = mods
        R = [regs_of(o) for o in ops]
        allr = lambda idx: [r for i in idx for r in R[i]]
        n = len(ops)
        base = op.replace("_e32", "").replace("_e64", "").replace("_sdwa", "").replace("_dpp", "")
        if op.startswith("v_mfma"):
            self.kind = "mfma"; self.dst = R[0]; self.A = R[1]; self.B = R[2]; self.C = R[3]
            self.src = allr(range(1, 4))
            self.passes = 8 if "32x32" in op else 4
        elif op.startswith("v_"):
            self.kind = "valu"
            if base.startswith("v_cmp"):
                self.dst = R[0]; self.src = allr(range(1, n))
                if base.startswith("v_cmpx"): raise ValueError("no cmpx")
            elif "permlane" in base and "swap" in base:
                self.dst = allr(range(2)); self.src = allr(range(2))
            elif base.startswith(("v_add_co", "v_sub_co", "v_subrev_co")):
                self.dst = allr(range(2)); self.src = allr(range(2, n))
            elif base.startswith(("v_addc_co", "v_subb_co")):
                self.dst = allr(range(2)); self.src = allr(range(2, n))
            elif base == "v_nop":
                self.dst = []; self.src = []
            else:
                self.dst = R[0]; self.src = allr(range(1, n))
                if base.startswith(("v_fmac", "v_mac", "v_dot2c", "v_dot4c", "v_writelane", "v_pk_fmac")):
                    self.src = self.src + R[0]
                if self.is_dpp() or any("UNUSED_PRESERVE" in m for m in mods) or any(m.startswith("op_sel") for m in mods) and not base.startswith("v_pk"):
                    self.src = self.src + R[0]
        elif op.startswith("ds_"):
            self.kind = "ds"; self.cnt = "lgkm"
            if op.startswith(("ds_read", "ds_swizzle", "ds_bpermute", "ds_permute")) or "_rtn" in op:
                self.dst = R[0]; self.src = allr(range(1, n))
            else:
                self.dst = []; self.src = allr(range(n))
        elif op.startswith(("buffer_", "global_")):
            self.kind = "vmem"; self.cnt = "vm"
            if "lds" in mods or "load_lds" in op:
                self.dst = []; self.src = allr(range(n)) + [("s", "m0")]; self.kind = "dma"
            elif "load" in op:
                self.dst = R[0]; self.src = allr(range(1, n))
            elif "atomic" in op and ("sc0" in mods or "glc" in mods):
                if op.startswith("global"):
                    self.dst = R[0]; self.src = allr(range(1, n))
                else:
                    self.dst = R[0]; self.src = allr(range(n))
            elif op in ("buffer_wbl2", "buffer_inv"):
                self.dst = []; self.src = []
            else:
                self.dst = []; self.src = allr(range(n))
                self.wide = op.endswith(("x3", "x4"))
        elif op.startswith(("s_load", "s_buffer_load", "s_memtime", "s_memrealtime", "s_atomic")):
            self.kind = "smem"; self.cnt = "lgkm"
            self.dst = R[0]; self.src = allr(range(1, n))
            if op.startswith("s_atomic"): self.src = allr(range(n))
        elif op.startswith("s_"):
            self.kind = "salu"
            if op.startswith(NODST_S):
                self.dst = []; self.src = allr(range(n))
                if op.startswith(("s_branch", "s_cbranch")):
                    self.target = ops[0]; self.kind = "branch"
                    if "vcc" in op: self.src = [("s", "vcc_lo"), ("s", "vcc_hi")]
                    if "exec" in op: self.src = [("s", "exec_lo"), ("s", "exec_hi")]
            elif "saveexec" in op:
                self.dst = R[0] + regs_of("exec"); self.src = allr(range(1, n)) + regs_of("exec")
            else:
                self.dst = R[0]; self.src = allr(range(1, n))
                if op.startswith(("s_cmov", "s_bitset", "s_addk", "s_mulk")): self.src = self.src + R[0]
        else:
            raise ValueError("unknown instr " + text)
    def is_dpp(self):
        return any(m.startswith(("quad_perm", "row_shr", "row_shl", "row_ror", "row_mirror", "row_half_mirror", "row_bcast",
                                 "wave_shr", "wave_shl", "wave_ror", "wave_rol", "row_newbcast")) for m in self.mods)
    def base(self):
        return self.op.replace("_e32", "").replace("_e64", "").replace("_sdwa", "").replace("_dpp", "")

class State:
    def __init__(self):
        self.haz = {}; self.vm = {}; self.lg = {}; self.sm = set()
    def copy(self):
        o = State(); o.haz = dict(self.haz); o.vm = dict(self.vm); o.lg = dict(self.lg); o.sm = set(self.sm); return o
    def merge(self, o):
        ch = False
        for k, val in o.haz.items():
            if k not in self.haz or self.haz[k][0] > val[0]:
                self.haz[k] = val; ch = True
            elif self.haz[k][0] == val[0] and self.haz[k][1] != val[1]:
                nv = (val[0], (max(val[1][0], self.haz[k][1][0]), None) if k[0] == "mD" else val[1])
                if nv != self.haz[k]: self.haz[k] = nv; ch = True
        for d, od in ((self.vm, o.vm), (self.lg, o.lg)):
            for k, val in od.items():
                if k not in d or d[k] > val:
                    d[k] = val; ch = True
        if not o.sm <= self.sm:
            self.sm |= o.sm; ch = True
        return ch
    def age(self, n):
        self.haz = {k: (ag + n, inf) for k, (ag, inf) in self.haz.items() if ag + n < 24}

def step(ins, st, out):
    if ins.kind in ("label", "dir"):
        out.append(ins.text); return
    op = ins.op
    if op == "s_waitcnt":
        m = re.search(r"vmcnt\((\d+)\)", ins.text)
        if m:
            n = int(m.group(1)); st.vm = {k: c for k, c in st.vm.items() if c < n}
        m = re.search(r"lgkmcnt\((\d+)\)", ins.text)
        if m:
            n = int(m.group(1))
            if n == 0: st.lg = {}; st.sm = set()
            elif not st.sm: st.lg = {k: c for k, c in st.lg.items() if c < n}
        out.append(ins.text); st.age(1); return
    if op == "s_nop":
        out.append(ins.text); st.age(int(ins.ops[0]) + 1); return
    touched = set(ins.src) | set(ins.dst)
    nvm = min([st.vm[r] for r in touched if r in st.vm], default=None)
    nlg = min([st.lg[r] for r in touched if r in st.lg], default=None)
    if any(r in st.sm for r in touched): nlg = 0
    if nlg is not None and st.sm: nlg = 0
    w = []
    if nvm is not None:
        nvm = min(nvm, 63); w.append(f"vmcnt({nvm})"); st.vm = {k: c for k, c in st.vm.items() if c < nvm}
    if nlg is not None:
        nlg = min(nlg, 15); w.append(f"lgkmcnt({nlg})")
        if nlg == 0: st.lg = {}; st.sm = set()
        else: st.lg = {k: c for k, c in st.lg.items() if c < nlg}
    if w:
        out.append("s_waitcnt " + " ".join(w)); st.age(1)
    need = 0
    H = st.haz
    def req(cls, regs, dist):
        nonlocal need
        for r in regs:
            e = H.get((cls, r))
            if e is not None:
                d = dist(e[1]) if callable(dist) else dist
                need = max(need, d - e[0])
    vsrc = [r for r in ins.src if r[0] in "va"]
    ssrc = [r for r in ins.src if r[0] == "s"]
    vdst = [r for r in ins.dst if r[0] in "va"]
    b = ins.base()
    isdot = b.startswith("v_dot")
    if ins.kind == "mfma":
        req("valu", vsrc, 2); req("dot", vsrc + vdst, 3)
        key = (tuple(ins.dst), ins.passes)
        for r in ins.C:
            e = H.get(("mD", r))
            if e is not None:
                p, k = e[1]
                if not (k == (tuple(ins.C), ins.passes)):
                    need = max(need, p + 2 - e[0])
        req("mD", list(ins.A) + list(ins.B), lambda i: i[0] + 4)
        for r in ins.dst:
            e = H.get(("mD", r))
            if e is not None and r not in ins.C:
                need = max(need, e[1][0] + 2 - e[0])
    elif ins.kind == "valu":
        req("mD", vsrc + vdst, lambda i: i[0] + 4)
        req("mC", vdst, lambda i: i - 1)
        if b not in TRANS: req("trans", vsrc, 1)
        for r in vsrc + vdst:
            e = H.get(("dot", r))
            if e is not None:
                if isdot and e[1] == b and r in ins.dst and (b.startswith("v_dot2c") or r in regs_of(ins.ops[3])) and r not in regs_of(ins.ops[1]) + regs_of(ins.ops[2]):
                    pass
                else:
                    need = max(need, 3 - e[0])
        if "permlane" in b: req("valu", vsrc, 2)
        if ins.is_dpp(): req("valu", vsrc, 2)
        if b.startswith(("v_readlane", "v_readfirstlane")): req("valu", vsrc, 1)
        req("vsgpr", ssrc, 4 if b.startswith(("v_readlane", "v_writelane")) else 2)
        req("st", vdst, 2)
        req("sdwa", vsrc + vdst, 1)
    elif ins.kind in ("vmem", "dma", "ds"):
        req("mD", vsrc + vdst, lambda i: i[0] + 4)
        req("dot", vsrc + vdst, 3)
        if ins.kind != "ds": req("vsgpr", ssrc, 5)
        if ins.kind == "dma": req("m0", [("s", "m0")], 1)
        req("st", vdst, 1)
    elif ins.kind in ("salu", "branch", "smem"):
        if ins.kind == "branch" and "vcc" in op: req("vsgpr", ssrc, 5)
        if ins.kind == "smem": req("vsgpr", ssrc, 5)
    while need > 0:
        n = min(need, 16)
        out.append(f"s_nop {n-1}"); st.age(n); need -= n
    out.append(ins.text)
    st.age(1)
    H = st.haz
    for r in ins.dst:
        for cls in ("valu", "trans", "dot", "mD", "vsgpr", "sdwa"):
            H.pop((cls, r), None)
    if ins.kind == "mfma":
        for r in ins.dst: H[("mD", r)] = (0, (ins.passes, (tuple(ins.dst), ins.passes)))
        for r in ins.C: H[("mC", r)] = (0, ins.passes)
    elif ins.kind == "valu":
        for r in ins.dst:
            if r[0] in "va":
                if isdot: H[("dot", r)] = (0, b)
                else: H[("valu", r)] = (0, None)
                if b in TRANS: H[("trans", r)] = (0, None)
                if "sdwa" in op or any(m.startswith(("dst_sel", "op_sel")) for m in ins.mods) and not b.startswith("v_pk"):
                    H[("sdwa", r)] = (0, None)
            else:
                H[("vsgpr", r)] = (0, None)
    elif ins.kind == "salu":
        if ("s", "m0") in ins.dst: H[("m0", ("s", "m0"))] = (0, None)
    if ins.wide:
        for r in regs_of(ins.ops[0] if op.startswith("buffer") else ins.ops[1]): H[("st", r)] = (0, None)
    if ins.cnt == "vm":
        st.vm = {k: c + 1 for k, c in st.vm.items()}
        for r in ins.dst: st.vm[r] = 0
    elif ins.cnt == "lgkm":
        if ins.kind == "smem":
            st.sm |= set(ins.dst)
            if not ins.dst: st.sm.add(("s", "_"))
        else:
            st.lg = {k: c + 1 for k, c in st.lg.items()}
            for r in ins.dst: st.lg[r] = 0

class Kern:
    def __init__(self, name):
        self.name = name; self.ins = []; self.nv = 0; self.na = 0; self.ns = 0; self._lab = 0
    def __call__(self, text):
        for line in text.strip().split("\n"):
            line = line.split(";")[0].strip()
            if line: self.ins.append(Ins(line))
    def label(self, name):
        self.ins.append(Ins(name + ":"))
    def newlabel(self, pfx="L"):
        self._lab += 1
        return f"{pfx}_{self.name[:6]}_{self._lab}"
    def finish(self):
        ins = self.ins
        starts = {0}
        for i, x in enumerate(ins):
            if x.kind == "label": starts.add(i)
            if x.kind == "branch" or x.op == "s_endpgm": starts.add(i + 1)
        starts = sorted(q for q in starts if q < len(ins))
        blocks = [(starts[j], starts[j + 1] if j + 1 < len(starts) else len(ins)) for j in range(len(starts))]
        lab2blk = {ins[b0].label: j for j, (b0, b1) in enumerate(blocks) if ins[b0].kind == "label"}
        sin = [None] * len(blocks); sin[0] = State()
        outs = [None] * len(blocks)
        work = [0]
        it = 0
        while work:
            it += 1
            assert it < 20000, "no fixpoint"
            j = work.pop(0)
            st = sin[j].copy(); out = []
            b0, b1 = blocks[j]
            for x in ins[b0:b1]: step(x, st, out)
            outs[j] = out
            last = ins[b1 - 1]
            succ = []
            if last.kind == "branch":
                if last.target in lab2blk: succ.append(lab2blk[last.target])
                else: raise ValueError("unknown label " + last.target)
                if last.op != "s_branch" and j + 1 < len(blocks): succ.append(j + 1)
            elif last.op != "s_endpgm" and j + 1 < len(blocks):
                succ.append(j + 1)
            for q in succ:
                if sin[q] is None:
                    sin[q] = st.copy(); work.append(q)
                elif sin[q].merge(st):
                    if q not in work: work.append(q)
        lines = []
        for j, o in enumerate(outs):
            if o is None:
                raise ValueError(f"unreachable block at {ins[blocks[j][0]].text}")
            lines += o
        for x in ins:
            for r in list(x.dst) + list(x.src):
                if isinstance(r[1], int):
                    if r[0] == "v": self.nv = max(self.nv, r[1] + 1)
                    if r[0] == "a": self.na = max(self.na, r[1] + 1)
                    if r[0] == "s": self.ns = max(self.ns, r[1] + 1)
        return lines
```

```python
from asm import Kern, v, s, a
MB = 1 << 20
QF = 0; KF = 2*MB; VF = 4*MB; OF = 6*MB; HF = 8*MB; STATS = 10*MB; GF = 12*MB
PWO = 20*MB; PW2 = 24*MB; PW13 = 26*MB; PW13S = 4*MB; STAMP = 36*MB
WS_BYTES = 268435456
LOG2E = 1.4426950408889634
import struct
def f2u(x): return struct.unpack("<I", struct.pack("<f", x))[0]
def hx(x): return f"0x{x:x}"

ARG = dict(x=0, wqkv=8, wo=16, w1=32, w3=40, w2=48, out=56, dbg=64, ws=72)
SZ = dict(x=2048*512*2, wqkv=512*1536*2, wo=512*512*2, w1=512*1792*2, w3=512*1792*2, w2=1792*512*2,
          out=2048*512*2, dbg=256, ws=WS_BYTES)

STAMPS = False

def prologue(k, srds, nwg=256):
    k.nstamp = 0
    if STAMPS:
        k("s_memrealtime s[88:89]")
        k("s_memtime s[90:91]")
        for i in range(12): k(f"s_mov_b32 s{64+2*i}, 0")
    k(f"s_cmp_ge_u32 s2, {nwg}")
    k(f"s_cbranch_scc1 {k.name}_exit")
    for nm, r in srds:
        k(f"s_load_dwordx2 {s(r,2)}, s[0:1], {ARG[nm]}")
    k("v_lshrrev_b32 v1, 6, v0")
    k("v_readfirstlane_b32 s3, v1")
    k("v_and_b32 v1, 63, v0")
    for nm, r in srds:
        k(f"s_mov_b32 {s(r+2)}, {hx(SZ[nm])}")
        k(f"s_mov_b32 {s(r+3)}, 0x00020000")

def epilogue(k, ws_srd, kidx):
    if STAMPS:
        k("s_waitcnt vmcnt(0) lgkmcnt(0)")
        k("s_memtime s[86:87]")
        k("s_memrealtime s[92:93]")
        k("s_getreg_b32 s94, hwreg(HW_REG_XCC_ID)")
        k("s_mov_b64 exec, 1")
        k("s_lshl_b32 s95, s2, 4")
        k("s_add_u32 s95, s95, s3")
        k("s_lshl_b32 s95, s95, 6")
        k(f"s_add_u32 s95, s95, {hx(STAMP + kidx*262144)}")
        k("v_mov_b32 v4, s88\nv_mov_b32 v5, s92\nv_mov_b32 v6, s94\nv_mov_b32 v7, s90\nv_mov_b32 v2, 0")
        for i in range(12): k(f"v_mov_b32 v{8+i}, s{64+2*i}")
        for i in range(4): k(f"buffer_store_dwordx4 v[{4+4*i}:{7+4*i}], v2, {s(ws_srd,4)}, s95 offen offset:{16*i}")
    k.label(f"{k.name}_exit")
    k("s_endpgm")

def stamp(k, i, sync=False):
    if STAMPS:
        assert i < 11
        k(f"s_memtime s[{64+2*i}:{65+2*i}]")
        if sync: k("s_waitcnt lgkmcnt(0)")

def swap2(k, dst, src, tmp):
    k(f"v_and_b32 {v(tmp)}, 1, {v(src)}")
    k(f"v_lshlrev_b32 {v(tmp)}, 1, {v(tmp)}")
    k(f"v_bfe_u32 {v(dst)}, {v(src)}, 1, 1")
    k(f"v_or_b32 {v(dst)}, {v(dst)}, {v(tmp)}")
```

```python
import sys, os
sys.path.insert(0, os.path.dirname(os.path.abspath(__file__)))
import common
NAME = "sequential_preLN__softmax_full_mha__glu_gated_swiglu__prompt"
REF = f"cdna_kernels/{NAME}.s.ref"

def build(gens, out, stamps=False):
    common.STAMPS = stamps
    head = [l for l in open(REF).read().split("\n") if l.startswith(";") and "@launch" not in l and "Override launch" not in l and "grid=ceil" not in l]
    ks = [g() for g in gens]
    L = list(head)
    for k, (grid, block, lds) in ks:
        L.append(f"; @launch kernel={k.name} grid=({grid},1,1) block=({block},1,1) lds={lds}")
    L += ['.amdgcn_target "amdgcn-amd-amdhsa--gfx950"', ".text"]
    desc = []
    for k, _ in ks:
        lines = k.finish()
        L += [f".globl {k.name}", ".p2align 8", f".type {k.name},@function", f"{k.name}:"]
        L += [(l if l.endswith(":") else "  " + l) for l in lines]
        nv = (k.nv + 3) // 4 * 4
        tot = nv + k.na if k.na else k.nv
        desc += [".p2align 6", f".amdhsa_kernel {k.name}",
                 f"  .amdhsa_next_free_vgpr {tot}", f"  .amdhsa_next_free_sgpr {max(k.ns, 16)}",
                 f"  .amdhsa_accum_offset {nv}", "  .amdhsa_group_segment_fixed_size 0", "  .amdhsa_kernarg_size 80",
                 "  .amdhsa_user_sgpr_count 2", "  .amdhsa_user_sgpr_kernarg_segment_ptr 1",
                 "  .amdhsa_system_sgpr_workgroup_id_x 1", ".end_amdhsa_kernel"]
        print(f"{k.name}: {len(lines)} lines, vgpr {k.nv} agpr {k.na} sgpr {k.ns}", file=sys.stderr)
    L += ['.section .rodata,"a"'] + desc
    open(out, "w").write("\n".join(L) + "\n")

if __name__ == "__main__":
    import importlib
    names = ["k1", "k2", "k3", "k4", "k5"]
    gens = []
    for n in names:
        try:
            m = importlib.import_module(n)
        except ModuleNotFoundError:
            continue
        gens.append(getattr(m, "gen_" + n))
    if len(sys.argv) > 1:
        build(gens, f"gen/{sys.argv[1]}", stamps=True)
    else:
        build(gens, f"cdna_kernels/{NAME}.s")
        build(gens, f"stamped.s", stamps=True)
```

```python
import re

TRANS = ("v_exp_f32", "v_log_f32", "v_rcp_f32", "v_rsq_f32", "v_sqrt_f32", "v_sin_f32", "v_cos_f32",
         "v_exp_f16", "v_rcp_f16", "v_rcp_iflag_f32")
NODST_S = ("s_cmp", "s_waitcnt", "s_barrier", "s_nop", "s_branch", "s_cbranch", "s_endpgm", "s_setprio",
           "s_sleep", "s_bitcmp", "s_setpc", "s_sendmsg", "s_setreg", "s_ttrace", "s_sethalt")

def v(i, n=1):
    return f"v{i}" if n == 1 else f"v[{i}:{i+n-1}]"
def a(i, n=1):
    return f"a{i}" if n == 1 else f"a[{i}:{i+n-1}]"
def s(i, n=1):
    return f"s{i}" if n == 1 else f"s[{i}:{i+n-1}]"

_rg = re.compile(r"^(-|\|)?([vsa])(\d+)\|?$")
_rr = re.compile(r"^(-|\|)?([vsa])\[(\d+):(\d+)\]\|?$")
def regs_of(op):
    op = op.strip()
    if op.startswith("neg(") or op.startswith("abs("):
        op = op[4:-1]
    m = _rg.match(op)
    if m: return [(m.group(2), int(m.group(3)))]
    m = _rr.match(op)
    if m: return [(m.group(2), i) for i in range(int(m.group(3)), int(m.group(4)) + 1)]
    if op == "vcc": return [("s", "vcc_lo"), ("s", "vcc_hi")]
    if op in ("vcc_lo", "vcc_hi", "m0", "exec_lo", "exec_hi"): return [("s", op)]
    if op == "exec": return [("s", "exec_lo"), ("s", "exec_hi")]
    return []

class Ins:
    __slots__ = ("text", "op", "ops", "mods", "dst", "src", "kind", "label", "target", "A", "B", "C", "passes",
                 "cnt", "wide", "comment", "nowait")
    def __init__(self, text):
        self.text = text.strip()
        self.nowait = False
        if self.text.endswith("!nw"):
            self.text = self.text[:-3].strip(); self.nowait = True
        self.label = None; self.target = None
        self.A = self.B = self.C = ()
        self.passes = 0; self.cnt = None; self.wide = False
        t = self.text
        if t.endswith(":"):
            self.label = t[:-1]; self.op = "label"; self.kind = "label"; self.dst = []; self.src = []; self.ops = []; self.mods = []
            return
        if t.startswith("."):
            self.op = "dir"; self.kind = "dir"; self.dst = []; self.src = []; self.ops = []; self.mods = []
            return
        parts = t.split(None, 1)
        op = parts[0]; rest = parts[1] if len(parts) > 1 else ""
        self.op = op
        ops = []; cur = ""; depth = 0
        for ch in rest:
            if ch in "[(": depth += 1
            if ch in "])": depth -= 1
            if ch == "," and depth == 0:
                ops.append(cur.strip()); cur = ""
            else:
                cur += ch
        if cur.strip(): ops.append(cur.strip())
        mods = []
        if ops and not op.startswith("s_waitcnt"):
            last = ops[-1].split()
            ops[-1] = last[0]; mods = last[1:]
        self.ops = ops; self.mods = mods
        R = [regs_of(o) for o in ops]
        allr = lambda idx: [r for i in idx for r in R[i]]
        n = len(ops)
        base = op.replace("_e32", "").replace("_e64", "").replace("_sdwa", "").replace("_dpp", "")
        if op.startswith("v_mfma"):
            self.kind = "mfma"; self.dst = R[0]; self.A = R[1]; self.B = R[2]; self.C = R[3]
            self.src = allr(range(1, 4))
            self.passes = 8 if "32x32" in op else 4
        elif op.startswith("v_"):
            self.kind = "valu"
            if base.startswith("v_cmp"):
                self.dst = R[0]; self.src = allr(range(1, n))
                if base.startswith("v_cmpx"): raise ValueError("no cmpx")
            elif "permlane" in base and "swap" in base:
                self.dst = allr(range(2)); self.src = allr(range(2))
            elif base.startswith(("v_add_co", "v_sub_co", "v_subrev_co")):
                self.dst = allr(range(2)); self.src = allr(range(2, n))
            elif base.startswith(("v_addc_co", "v_subb_co")):
                self.dst = allr(range(2)); self.src = allr(range(2, n))
            elif base == "v_nop":
                self.dst = []; self.src = []
            else:
                self.dst = R[0]; self.src = allr(range(1, n))
                if base.startswith(("v_fmac", "v_mac", "v_dot2c", "v_dot4c", "v_writelane", "v_pk_fmac")):
                    self.src = self.src + R[0]
                if self.is_dpp() or any("UNUSED_PRESERVE" in m for m in mods) or any(m.startswith("op_sel") for m in mods) and not base.startswith("v_pk"):
                    self.src = self.src + R[0]
        elif op.startswith("ds_"):
            self.kind = "ds"; self.cnt = "lgkm"
            if op.startswith(("ds_read", "ds_swizzle", "ds_bpermute", "ds_permute")) or "_rtn" in op:
                self.dst = R[0]; self.src = allr(range(1, n))
            else:
                self.dst = []; self.src = allr(range(n))
        elif op.startswith(("buffer_", "global_")):
            self.kind = "vmem"; self.cnt = "vm"
            if "lds" in mods or "load_lds" in op:
                self.dst = []; self.src = allr(range(n)) + [("s", "m0")]; self.kind = "dma"
            elif "load" in op:
                self.dst = R[0]; self.src = allr(range(1, n))
            elif "atomic" in op and ("sc0" in mods or "glc" in mods):
                if op.startswith("global"):
                    self.dst = R[0]; self.src = allr(range(1, n))
                else:
                    self.dst = R[0]; self.src = allr(range(n))
            elif op in ("buffer_wbl2", "buffer_inv"):
                self.dst = []; self.src = []
            else:
                self.dst = []; self.src = allr(range(n))
                self.wide = op.endswith(("x3", "x4"))
        elif op.startswith(("s_load", "s_buffer_load", "s_memtime", "s_memrealtime", "s_atomic")):
            self.kind = "smem"; self.cnt = "lgkm"
            self.dst = R[0]; self.src = allr(range(1, n))
            if op.startswith("s_atomic"): self.src = allr(range(n))
        elif op.startswith("s_"):
            self.kind = "salu"
            if op.startswith(NODST_S):
                self.dst = []; self.src = allr(range(n))
                if op.startswith(("s_branch", "s_cbranch")):
                    self.target = ops[0]; self.kind = "branch"
                    if "vcc" in op: self.src = [("s", "vcc_lo"), ("s", "vcc_hi")]
                    if "exec" in op: self.src = [("s", "exec_lo"), ("s", "exec_hi")]
            elif "saveexec" in op:
                self.dst = R[0] + regs_of("exec"); self.src = allr(range(1, n)) + regs_of("exec")
            else:
                self.dst = R[0]; self.src = allr(range(1, n))
                if op.startswith(("s_cmov", "s_bitset", "s_addk", "s_mulk")): self.src = self.src + R[0]
        else:
            raise ValueError("unknown instr " + text)
    def is_dpp(self):
        return any(m.startswith(("quad_perm", "row_shr", "row_shl", "row_ror", "row_mirror", "row_half_mirror", "row_bcast",
                                 "wave_shr", "wave_shl", "wave_ror", "wave_rol", "row_newbcast")) for m in self.mods)
    def base(self):
        return self.op.replace("_e32", "").replace("_e64", "").replace("_sdwa", "").replace("_dpp", "")

class State:
    def __init__(self):
        self.haz = {}; self.vm = {}; self.lg = {}; self.sm = set()
    def copy(self):
        o = State(); o.haz = dict(self.haz); o.vm = dict(self.vm); o.lg = dict(self.lg); o.sm = set(self.sm); return o
    def merge(self, o):
        ch = False
        for k, val in o.haz.items():
            if k not in self.haz or self.haz[k][0] > val[0]:
                self.haz[k] = val; ch = True
            elif self.haz[k][0] == val[0] and self.haz[k][1] != val[1]:
                nv = (val[0], (max(val[1][0], self.haz[k][1][0]), None) if k[0] == "mD" else val[1])
                if nv != self.haz[k]: self.haz[k] = nv; ch = True
        for d, od in ((self.vm, o.vm), (self.lg, o.lg)):
            for k, val in od.items():
                if k not in d or d[k] > val:
                    d[k] = val; ch = True
        if not o.sm <= self.sm:
            self.sm |= o.sm; ch = True
        return ch
    def age(self, n):
        self.haz = {k: (ag + n, inf) for k, (ag, inf) in self.haz.items() if ag + n < 24}

def step(ins, st, out):
    if ins.kind in ("label", "dir"):
        out.append(ins.text); return
    op = ins.op
    if op == "s_waitcnt":
        m = re.search(r"vmcnt\((\d+)\)", ins.text)
        if m:
            n = int(m.group(1)); st.vm = {k: c for k, c in st.vm.items() if c < n}
        m = re.search(r"lgkmcnt\((\d+)\)", ins.text)
        if m:
            n = int(m.group(1))
            if n == 0: st.lg = {}; st.sm = set()
            elif not st.sm: st.lg = {k: c for k, c in st.lg.items() if c < n}
        out.append(ins.text); st.age(1); return
    if op == "s_nop":
        out.append(ins.text); st.age(int(ins.ops[0]) + 1); return
    touched = set(ins.src) | set(ins.dst)
    nvm = min([st.vm[r] for r in touched if r in st.vm], default=None)
    nlg = min([st.lg[r] for r in touched if r in st.lg], default=None)
    if any(r in st.sm for r in touched): nlg = 0
    if nlg is not None and st.sm: nlg = 0
    if ins.nowait: nvm = None
    w = []
    if nvm is not None:
        nvm = min(nvm, 63); w.append(f"vmcnt({nvm})"); st.vm = {k: c for k, c in st.vm.items() if c < nvm}
    if nlg is not None:
        nlg = min(nlg, 15); w.append(f"lgkmcnt({nlg})")
        if nlg == 0: st.lg = {}; st.sm = set()
        else: st.lg = {k: c for k, c in st.lg.items() if c < nlg}
    if w:
        out.append("s_waitcnt " + " ".join(w)); st.age(1)
    need = 0
    H = st.haz
    def req(cls, regs, dist):
        nonlocal need
        for r in regs:
            e = H.get((cls, r))
            if e is not None:
                d = dist(e[1]) if callable(dist) else dist
                need = max(need, d - e[0])
    vsrc = [r for r in ins.src if r[0] in "va"]
    ssrc = [r for r in ins.src if r[0] == "s"]
    vdst = [r for r in ins.dst if r[0] in "va"]
    b = ins.base()
    isdot = b.startswith("v_dot")
    if ins.kind == "mfma":
        req("valu", vsrc, 2); req("dot", vsrc + vdst, 3)
        key = (tuple(ins.dst), ins.passes)
        for r in ins.C:
            e = H.get(("mD", r))
            if e is not None:
                p, k = e[1]
                if not (k == (tuple(ins.C), ins.passes)):
                    need = max(need, p + 2 - e[0])
        req("mD", list(ins.A) + list(ins.B), lambda i: i[0] + 4)
        for r in ins.dst:
            e = H.get(("mD", r))
            if e is not None and r not in ins.C:
                need = max(need, e[1][0] + 2 - e[0])
    elif ins.kind == "valu":
        req("mD", vsrc + vdst, lambda i: i[0] + 4)
        req("mC", vdst, lambda i: i - 1)
        if b not in TRANS: req("trans", vsrc, 1)
        for r in vsrc + vdst:
            e = H.get(("dot", r))
            if e is not None:
                if isdot and e[1] == b and r in ins.dst and (b.startswith("v_dot2c") or r in regs_of(ins.ops[3])) and r not in regs_of(ins.ops[1]) + regs_of(ins.ops[2]):
                    pass
                else:
                    need = max(need, 3 - e[0])
        if "permlane" in b: req("valu", vsrc, 2)
        if ins.is_dpp(): req("valu", vsrc, 2)
        if b.startswith(("v_readlane", "v_readfirstlane")): req("valu", vsrc, 1)
        req("vsgpr", ssrc, 4 if b.startswith(("v_readlane", "v_writelane")) else 2)
        req("st", vdst, 2)
        req("sdwa", vsrc + vdst, 1)
    elif ins.kind in ("vmem", "dma", "ds"):
        req("mD", vsrc + vdst, lambda i: i[0] + 4)
        req("dot", vsrc + vdst, 3)
        if ins.kind != "ds": req("vsgpr", ssrc, 5)
        if ins.kind == "dma": req("m0", [("s", "m0")], 1)
        req("st", vdst, 1)
    elif ins.kind in ("salu", "branch", "smem"):
        if ins.kind == "branch" and "vcc" in op: req("vsgpr", ssrc, 5)
        if ins.kind == "smem": req("vsgpr", ssrc, 5)
    while need > 0:
        n = min(need, 16)
        out.append(f"s_nop {n-1}"); st.age(n); need -= n
    out.append(ins.text)
    st.age(1)
    H = st.haz
    for r in ins.dst:
        for cls in ("valu", "trans", "dot", "mD", "vsgpr", "sdwa"):
            H.pop((cls, r), None)
    if ins.kind == "mfma":
        for r in ins.dst: H[("mD", r)] = (0, (ins.passes, (tuple(ins.dst), ins.passes)))
        for r in ins.C: H[("mC", r)] = (0, ins.passes)
    elif ins.kind == "valu":
        for r in ins.dst:
            if r[0] in "va":
                if isdot: H[("dot", r)] = (0, b)
                else: H[("valu", r)] = (0, None)
                if b in TRANS: H[("trans", r)] = (0, None)
                if "sdwa" in op or any(m.startswith(("dst_sel", "op_sel")) for m in ins.mods) and not b.startswith("v_pk"):
                    H[("sdwa", r)] = (0, None)
            else:
                H[("vsgpr", r)] = (0, None)
    elif ins.kind == "salu":
        if ("s", "m0") in ins.dst: H[("m0", ("s", "m0"))] = (0, None)
    if ins.wide:
        for r in regs_of(ins.ops[0] if op.startswith("buffer") else ins.ops[1]): H[("st", r)] = (0, None)
    if ins.cnt == "vm":
        st.vm = {k: c + 1 for k, c in st.vm.items()}
        for r in ins.dst: st.vm[r] = 0
    elif ins.cnt == "lgkm":
        if ins.kind == "smem":
            st.sm |= set(ins.dst)
            if not ins.dst: st.sm.add(("s", "_"))
        else:
            st.lg = {k: c + 1 for k, c in st.lg.items()}
            for r in ins.dst: st.lg[r] = 0

class Kern:
    def __init__(self, name):
        self.name = name; self.ins = []; self.nv = 0; self.na = 0; self.ns = 0; self._lab = 0
    def __call__(self, text):
        for line in text.strip().split("\n"):
            line = line.split(";")[0].strip()
            if line: self.ins.append(Ins(line))
    def label(self, name):
        self.ins.append(Ins(name + ":"))
    def newlabel(self, pfx="L"):
        self._lab += 1
        return f"{pfx}_{self.name[:6]}_{self._lab}"
    def finish(self):
        ins = self.ins
        starts = {0}
        for i, x in enumerate(ins):
            if x.kind == "label": starts.add(i)
            if x.kind == "branch" or x.op == "s_endpgm": starts.add(i + 1)
        starts = sorted(q for q in starts if q < len(ins))
        blocks = [(starts[j], starts[j + 1] if j + 1 < len(starts) else len(ins)) for j in range(len(starts))]
        lab2blk = {ins[b0].label: j for j, (b0, b1) in enumerate(blocks) if ins[b0].kind == "label"}
        sin = [None] * len(blocks); sin[0] = State()
        outs = [None] * len(blocks)
        work = [0]
        it = 0
        while work:
            it += 1
            assert it < 20000, "no fixpoint"
            j = work.pop(0)
            st = sin[j].copy(); out = []
            b0, b1 = blocks[j]
            for x in ins[b0:b1]: step(x, st, out)
            outs[j] = out
            last = ins[b1 - 1]
            succ = []
            if last.kind == "branch":
                if last.target in lab2blk: succ.append(lab2blk[last.target])
                else: raise ValueError("unknown label " + last.target)
                if last.op != "s_branch" and j + 1 < len(blocks): succ.append(j + 1)
            elif last.op != "s_endpgm" and j + 1 < len(blocks):
                succ.append(j + 1)
            for q in succ:
                if sin[q] is None:
                    sin[q] = st.copy(); work.append(q)
                elif sin[q].merge(st):
                    if q not in work: work.append(q)
        lines = []
        for j, o in enumerate(outs):
            if o is None:
                raise ValueError(f"unreachable block at {ins[blocks[j][0]].text}")
            lines += o
        for x in ins:
            for r in list(x.dst) + list(x.src):
                if isinstance(r[1], int):
                    if r[0] == "v": self.nv = max(self.nv, r[1] + 1)
                    if r[0] == "a": self.na = max(self.na, r[1] + 1)
                    if r[0] == "s": self.ns = max(self.ns, r[1] + 1)
        return lines
```

```python
from asm import Kern, v, s, a
MB = 1 << 20
KB = 1 << 10
QF = 0; KF = 2*MB; VF = 4*MB; LOC = 6*MB; OF = 12*MB; HF = 26*MB; STATS = 16*MB; GF = 18*MB
import os
HSTR = int(os.environ.get('HSTR', 33)); GSTR = int(os.environ.get('GSTR', 29))
FLG = 32*MB; STAMP = 36*MB
F1G = FLG; F1L = FLG + 128*KB; REG = FLG + 144*KB; F3 = FLG + 160*KB; F4 = FLG + 176*KB
WS_BYTES = 268435456
LOG2E = 1.4426950408889634
import struct
def f2u(x): return struct.unpack("<I", struct.pack("<f", x))[0]
def hx(x): return f"0x{x & 0xffffffff:x}"

ARG = dict(x=0, wqkv=8, wo=16, w1=32, w3=40, w2=48, out=56, dbg=64, ws=72)
SZ = dict(x=2048*512*2, wqkv=512*1536*2, wo=512*512*2, w1=512*1792*2, w3=512*1792*2, w2=1792*512*2,
          out=2048*512*2, dbg=256, ws=WS_BYTES)

STAMPS = False
NST = 32

def srd(k, nm, r):
    k(f"s_load_dwordx2 {s(r,2)}, s[0:1], {ARG[nm]}")
    k(f"s_mov_b32 {s(r+2)}, {hx(SZ[nm])}")
    k(f"s_mov_b32 {s(r+3)}, 0x00020000")

def prologue(k, srds, nwg=256):
    if STAMPS:
        k("s_memrealtime s[98:99]")
        k("s_memtime s[100:101]")
        for i in range(NST): k(f"s_mov_b32 s{64+i}, 0")
    k(f"s_cmp_ge_u32 s2, {nwg}")
    k(f"s_cbranch_scc1 {k.name}_exit")
    for nm, r in srds:
        k(f"s_load_dwordx2 {s(r,2)}, s[0:1], {ARG[nm]}")
    k("v_lshrrev_b32 v1, 6, v0")
    k("v_readfirstlane_b32 s3, v1")
    k("v_and_b32 v1, 63, v0")
    for nm, r in srds:
        k(f"s_mov_b32 {s(r+2)}, {hx(SZ[nm])}")
        k(f"s_mov_b32 {s(r+3)}, 0x00020000")

KIDX = 0
def epilogue(k, ws_srd):
    kidx = KIDX
    if STAMPS:
        k("s_waitcnt vmcnt(0) lgkmcnt(0)")
        k("s_memtime s[96:97]")
        k("s_memrealtime s[40:41]")
        k("s_getreg_b32 s42, hwreg(HW_REG_XCC_ID)")
        k("s_mov_b64 exec, 1")
        k("s_lshl_b32 s43, s2, 3")
        k("s_add_u32 s43, s43, s3")
        k("s_lshl_b32 s43, s43, 8")
        k(f"s_add_u32 s43, s43, {hx(STAMP + kidx*524288)}")
        k("v_mov_b32 v4, s98\nv_mov_b32 v5, s40\nv_mov_b32 v6, s42\nv_mov_b32 v7, s100\nv_mov_b32 v2, 0")
        for i in range(NST): k(f"v_mov_b32 v{8+i}, s{64+i}")
        k(f"v_mov_b32 v{8+NST}, s96")
        for i in range((NST + 8) // 4): k(f"buffer_store_dwordx4 v[{4+4*i}:{7+4*i}], v2, {s(ws_srd,4)}, s43 offen offset:{16*i}")
    k.label(f"{k.name}_exit")
    k("s_endpgm")

def stamp(k, i):
    if STAMPS:
        assert i < NST
        k("s_memtime s[96:97]")
        k("s_waitcnt lgkmcnt(0)")
        k(f"s_mov_b32 s{64+i}, s96")

def swap2(k, dst, src, tmp):
    k(f"v_and_b32 {v(tmp)}, 1, {v(src)}")
    k(f"v_lshlrev_b32 {v(tmp)}, 1, {v(tmp)}")
    k(f"v_bfe_u32 {v(dst)}, {v(src)}, 1, 1")
    k(f"v_or_b32 {v(dst)}, {v(dst)}, {v(tmp)}")

class VM:
    def __init__(self, k): self.k = k; self.n = 0; self.tag = {}
    def op(self, text, tag=None):
        self.k(text); self.n += 1
        if tag: self.tag[tag] = self.n
    def mark(self, tag): self.tag[tag] = self.n
    def wait(self, tag):
        c = self.n - self.tag[tag]
        assert 0 <= c, c
        self.k(f"s_waitcnt vmcnt({min(c, 63)})")
    def wait0(self): self.k("s_waitcnt vmcnt(0)")
```

```python
import sys, os
sys.path.insert(0, os.path.dirname(os.path.abspath(__file__)))
import common
NAME = "sequential_preLN__softmax_full_mha__glu_gated_swiglu__prompt"
REF = f"cdna_kernels/{NAME}.s.ref"

def build(gens, out, stamps=False):
    common.STAMPS = stamps
    head = [l for l in open(REF).read().split("\n") if l.startswith(";") and "@launch" not in l and "Override launch" not in l and "grid=ceil" not in l]
    ks = []
    for i, g in enumerate(gens):
        common.KIDX = i
        ks.append(g())
    L = list(head)
    for k, (grid, block, lds) in ks:
        L.append(f"; @launch kernel={k.name} grid=({grid},1,1) block=({block},1,1) lds={lds}")
    L += ['.amdgcn_target "amdgcn-amd-amdhsa--gfx950"', ".text"]
    desc = []
    for k, _ in ks:
        lines = k.finish()
        L += [f".globl {k.name}", ".p2align 8", f".type {k.name},@function", f"{k.name}:"]
        L += [(l if l.endswith(":") else "  " + l) for l in lines]
        nv = (k.nv + 3) // 4 * 4
        tot = nv + k.na if k.na else k.nv
        desc += [".p2align 6", f".amdhsa_kernel {k.name}",
                 f"  .amdhsa_next_free_vgpr {tot}", f"  .amdhsa_next_free_sgpr {max(k.ns, 16)}",
                 f"  .amdhsa_accum_offset {nv}", "  .amdhsa_group_segment_fixed_size 0", "  .amdhsa_kernarg_size 80",
                 "  .amdhsa_user_sgpr_count 2", "  .amdhsa_user_sgpr_kernarg_segment_ptr 1",
                 "  .amdhsa_system_sgpr_workgroup_id_x 1", ".end_amdhsa_kernel"]
        print(f"{k.name}: {len(lines)} lines, vgpr {k.nv} agpr {k.na} sgpr {k.ns}", file=sys.stderr)
    L += ['.section .rodata,"a"'] + desc
    open(out, "w").write("\n".join(L) + "\n")

if __name__ == "__main__":
    import importlib
    names = os.environ.get("KERNS", "kz").split(",")
    gens = []
    for n in names:
        try:
            m = importlib.import_module(n)
        except ModuleNotFoundError:
            continue
        gens.append(getattr(m, "gen_" + n))
    if len(sys.argv) > 1:
        build(gens, f"gen3/{sys.argv[1]}", stamps=True)
    else:
        build(gens, f"real.s")
        build(gens, f"stamped.s", stamps=True)
```
